```python
import torch

def _softmax(x, axis=-1):
    return torch.softmax(x, dim=axis)
def _gelu(x):
    return torch.nn.functional.gelu(x, approximate="tanh")
def _silu(x):
    return torch.nn.functional.silu(x)
def _sigmoid(x):
    return torch.sigmoid(x)
def _layernorm(x, axis=-1, eps=1e-5):
    m = x.mean(dim=axis, keepdim=True)
    v = x.var(dim=axis, keepdim=True, unbiased=False)
    return (x - m) / torch.sqrt(v + eps)
def _scatter_add(tgt, idx, src, axis=0):
    return tgt.clone().index_add_(axis, idx, src)
def _segment_sum(src, seg, n):
    out = torch.zeros((n,) + src.shape[1:], dtype=src.dtype)
    return out.index_add_(0, seg, src)
def _pad(x, pw):
    flat = tuple(v for pair in reversed(pw) for v in pair)
    return torch.nn.functional.pad(x, flat)

kernel_name = 'recurrent_scan__linear_kernel_hedgehog__glu_gated_geglu__prompt'

def setup_inputs():

    _w = (lambda a: (lambda t: t.to(torch.bfloat16) if t.is_floating_point() else t)(torch.as_tensor(a)))
    def _A_setup():
        B, S, D, H = 1, 2048, 512, 32
        Dh = D // H
        return {
            "x": _w((lambda *s: torch.randn(*s, dtype=torch.bfloat16) * 0.05)(B, S, D)),
            "wqkv": _w((lambda *s: torch.randn(*s, dtype=torch.bfloat16) * 0.8)(D, 3 * D)),
            "w_phi": _w((lambda *s: torch.randn(*s, dtype=torch.bfloat16) * 0.8)(H, Dh, Dh) * (Dh ** -0.5)),
            "wo": _w((lambda *s: torch.randn(*s, dtype=torch.bfloat16) * 0.8)(D, D)),
        }
    _A_in = _A_setup()

    def _B_setup():
        B, S, Dm, Df = 1, 2048, 512, 1792
        return {
            "x": _w((lambda *s: torch.randn(*s, dtype=torch.bfloat16) * 0.05)(B, S, Dm)),
            "w_gate": _w((lambda *s: torch.randn(*s, dtype=torch.bfloat16) * 0.2)(Dm, Df) * (Dm ** -0.5)),
            "w_up": _w((lambda *s: torch.randn(*s, dtype=torch.bfloat16) * 0.2)(Dm, Df) * (Dm ** -0.5)),
            "w_down": _w((lambda *s: torch.randn(*s, dtype=torch.bfloat16) * 0.2)(Df, Dm) * (Df ** -0.5)),
        }
    _B_in = _B_setup()

    return {
        "A_x": _A_in["x"],
        "A_wqkv": _A_in["wqkv"],
        "A_w_phi": _A_in["w_phi"],
        "A_wo": _A_in["wo"],
        "B_x": _B_in["x"],
        "B_w_gate": _B_in["w_gate"],
        "B_w_up": _B_in["w_up"],
        "B_w_down": _B_in["w_down"],
    }

def reference(A_x, A_wqkv, A_w_phi, A_wo, B_x, B_w_gate, B_w_up, B_w_down):
    def _A_ref(x, wqkv, w_phi, wo):
        B, S, D = x.shape
        H = 32; Dh = D // H
        qkv = (lambda x, *d: x.permute(*d))((x @ wqkv).reshape(B, S, 3, H, Dh), 2, 0, 3, 1, 4)
        q, k, v = qkv[0], qkv[1], qkv[2]
        pq = torch.einsum("bhsd,hdf->bhsf", q, w_phi)
        pk = torch.einsum("bhsd,hdf->bhsf", k, w_phi)
        phi_q = torch.concatenate([_softmax(pq, axis=-1), _softmax(-pq, axis=-1)], axis=-1)
        phi_k = torch.concatenate([_softmax(pk, axis=-1), _softmax(-pk, axis=-1)], axis=-1)
        kv = torch.einsum("bhsf,bhsd->bhfd", phi_k, v)
        z  = torch.einsum("bhsf->bhf", phi_k)
        num = torch.einsum("bhqf,bhfd->bhqd", phi_q, kv)
        den = torch.einsum("bhqf,bhf->bhq", phi_q, z)[..., None] + 1e-6
        o = num / den
        return (lambda x, *d: x.permute(*d))(o, 0, 2, 1, 3).reshape(B, S, D) @ wo

    def _B_ref(x, w_gate, w_up, w_down):
        g = torch.einsum("bsd,df->bsf", x, w_gate)
        u = torch.einsum("bsd,df->bsf", x, w_up)
        h = _gelu(g) * u
        return torch.einsum("bsf,fd->bsd", h, w_down)

    x = A_x
    xn = _layernorm(x, axis=-1)
    s = _A_ref(xn, A_wqkv, A_w_phi, A_wo)
    g = _silu(_B_ref(xn, B_w_gate, B_w_up, B_w_down))
    return x + s * g
```

```python
import re

KNAME = "recurrent_scan__linear_kernel_hedgehog__glu_gated_geglu__prompt_kernel"


def v(i, n=1):
    return f"v{i}" if n == 1 else f"v[{i}:{i+n-1}]"


def a(i, n=1):
    return f"a{i}" if n == 1 else f"a[{i}:{i+n-1}]"


def s(i, n=1):
    return f"s{i}" if n == 1 else f"s[{i}:{i+n-1}]"


class Asm:
    def __init__(self):
        self.lines = []

    def __call__(self, txt):
        for ln in txt.split("\n"):
            ln = ln.strip()
            if ln:
                self.lines.append(ln)
        return self

    def label(self, name):
        self.lines.append(f"{name}:")

    def comment(self, t):
        self.lines.append(f"; {t}")

    def extend(self, other):
        self.lines.extend(other.lines if isinstance(other, Asm) else other)


_REG = re.compile(r"\b([vas])(?:(\d+)|\[(\d+):(\d+)\])")
TRANS = ("v_exp_f32", "v_log_f32", "v_rcp_f32", "v_rsq_f32", "v_sqrt_f32", "v_sin_f32", "v_cos_f32",
         "v_rcp_iflag_f32")


def _regs(tok):
    out = set()
    for m in _REG.finditer(tok):
        k = m.group(1)
        if m.group(2) is not None:
            out.add((k, int(m.group(2))))
        else:
            for i in range(int(m.group(3)), int(m.group(4)) + 1):
                out.add((k, i))
    if re.search(r"\bvcc\b", tok):
        out.add(("s", 106)); out.add(("s", 107))
    if re.search(r"\bvcc_lo\b", tok):
        out.add(("s", 106))
    if re.search(r"\bvcc_hi\b", tok):
        out.add(("s", 107))
    if re.search(r"\bexec(_lo|_hi)?\b", tok):
        out.add(("s", 126)); out.add(("s", 127))
    if re.search(r"\bm0\b", tok):
        out.add(("s", 124))
    return out


def _split_ops(rest):
    ops, depth, cur = [], 0, ""
    for ch in rest:
        if ch in "[(":
            depth += 1
        if ch in "])":
            depth -= 1
        if ch == "," and depth == 0:
            ops.append(cur.strip()); cur = ""
        else:
            cur += ch
    if cur.strip():
        ops.append(cur.strip())
    return ops


class Ins:
    def __init__(self, line):
        self.line = line
        code = line.split(";")[0].strip()
        self.is_label = code.endswith(":")
        self.is_dir = code.startswith(".")
        self.empty = not code
        self.op = ""
        self.dst = set(); self.src = set()
        self.srcC = set(); self.srcAB = set()
        self.kind = None
        if self.empty or self.is_label or self.is_dir:
            return
        parts = code.split(None, 1)
        op = parts[0]
        op = re.sub(r"_(e32|e64|dpp|sdwa)$", "", op)
        self.op = op
        rest = parts[1] if len(parts) > 1 else ""
        ops = _split_ops(rest)
        self.mods = rest
        self.dpp = bool(re.search(r"\b(quad_perm|row_shr|row_shl|row_ror|row_bcast|row_mirror|row_half_mirror|wave_shr|wave_shl|wave_ror|wave_rol|row_newbcast)", rest))
        R = [_regs(o.split(" ")[0] if not o.startswith("-") and not o.startswith("abs") and not o.startswith("|") else o) for o in ops]
        if op.startswith("v_mfma"):
            self.kind = "mfma"
            self.dst = R[0]; self.srcAB = R[1] | R[2]; self.srcC = R[3]
            self.src = self.srcAB | self.srcC
            if "32x32x16" in op or "32x32x8" in op:
                self.passes = 8
            elif "16x16x32" in op or "16x16x16" in op:
                self.passes = 4
            elif "32x32x2_f32" in op:
                self.passes = 16; self.kind = "sgemm"
            elif "16x16x4_f32" in op:
                self.passes = 8; self.kind = "sgemm"
            else:
                raise ValueError(op)
        elif op.startswith("v_"):
            self.kind = "valu"
            if op.startswith("v_cmp"):
                self.dst = R[0]; self.src = set().union(*R[1:])
                if op.startswith("v_cmpx"):
                    self.dst |= {("s", 126), ("s", 127)}
            elif op in ("v_readfirstlane_b32", "v_readlane_b32"):
                self.dst = R[0]; self.src = set().union(*R[1:])
            elif op.startswith("v_permlane") and "swap" in op:
                self.dst = R[0] | R[1]; self.src = R[0] | R[1]
            elif op in ("v_add_co_u32", "v_sub_co_u32", "v_addc_co_u32", "v_subb_co_u32", "v_div_scale_f32", "v_mad_u64_u32"):
                self.dst = R[0] | R[1]; self.src = set().union(*R[2:])
            elif op == "v_nop":
                pass
            else:
                self.dst = R[0]; self.src = set().union(*R[1:]) if len(R) > 1 else set()
                if op.startswith(("v_fmac", "v_dot2c", "v_pk_fmac", "v_writelane", "v_mac")):
                    self.src |= R[0]
                if self.dpp:
                    self.src |= R[0]
                if op == "v_div_fmas_f32":
                    self.src |= {("s", 106), ("s", 107)}
            self.trans = op in TRANS
            self.dot = op.startswith("v_dot")
        elif op.startswith(("buffer_", "global_", "flat_")):
            self.kind = "vmem"
            lds = bool(re.search(r"\blds\b", rest)) or "_lds_" in op
            self.lds = lds
            load = "load" in op
            atomic = "atomic" in op
            allr = set().union(*R) if R else set()
            if op.startswith("buffer_wbl2") or op.startswith("buffer_inv"):
                pass
            elif load and not lds:
                self.dst = R[0]; self.src = set().union(*R[1:])
            elif atomic and re.search(r"\bsc0\b", rest):
                self.dst = R[0]; self.src = allr
            else:
                self.src = allr
            if lds:
                self.src |= {("s", 124)}
            self.wide_store = ("store" in op) and op.endswith(("x3", "x4"))
            if self.wide_store:
                self.sdata = R[0] if op.startswith("buffer_") else R[1]
        elif op.startswith("ds_"):
            self.kind = "ds"
            if "read" in op or "permute" in op or "swizzle" in op or "_rtn" in op:
                self.dst = R[0]; self.src = set().union(*R[1:])
            else:
                self.src = set().union(*R)
        elif op.startswith("s_"):
            self.kind = "salu"
            if op in ("s_nop", "s_waitcnt", "s_barrier", "s_endpgm", "s_setprio", "s_sleep", "s_branch") or op.startswith("s_cbranch"):
                pass
            elif op.startswith("s_cmp") or op.startswith("s_bitcmp"):
                self.src = set().union(*R)
            elif "saveexec" in op:
                self.dst = R[0] | {("s", 126), ("s", 127)}; self.src = set().union(*R[1:])
            else:
                self.dst = R[0] if R else set(); self.src = set().union(*R[1:]) if len(R) > 1 else set()
        else:
            raise ValueError("unknown op: " + line)

    def states(self):
        if self.op == "s_nop":
            return int(self.line.split(";")[0].split()[1], 0) + 1
        return 1


def _vr(x):
    return {r for r in x if r[0] in "va"}


def _sr(x):
    return {r for r in x if r[0] == "s"}


def need(p, c):
    n = 0
    pk, ck = p.kind, c.kind
    if pk == "valu":
        pv = _vr(p.dst); ps = _sr(p.dst)
        if ck in ("mfma", "sgemm") and pv & c.src:
            n = max(n, 3 if p.dot else 2)
        if ck == "valu":
            if c.dpp and pv & c.src: n = max(n, 2)
            if c.op.startswith("v_permlane") and pv & c.src: n = max(n, 2)
            if c.op in ("v_readlane_b32", "v_readfirstlane_b32") and pv & c.src: n = max(n, 1)
            if p.trans and not c.trans and pv & c.src: n = max(n, 1)
            if p.trans and c.trans and pv & c.src: n = max(n, 1)
            if ps & c.src:
                n = max(n, 4 if c.op in ("v_readlane_b32", "v_writelane_b32", "v_div_fmas_f32") else 2)
            if p.dot and (pv & (c.src | c.dst)):
                if c.op == p.op and not (pv & (c.src - c.dst)) :
                    pass
                else:
                    n = max(n, 3)
            if ("op_sel" in p.mods or "dst_sel" in p.mods) and pv & (c.src | c.dst): n = max(n, 1)
            if ("s", 126) in ps:
                if c.dpp: n = max(n, 5)
                if c.op.startswith(("v_permlane", "v_readlane", "v_readfirstlane", "v_writelane")): n = max(n, 4)
        if ck in ("vmem", "ds") and p.dot and pv & (c.src | c.dst): n = max(n, 3)
        if ck == "vmem" and ps & c.src: n = max(n, 5)
        if ck in ("mfma", "sgemm") and ("s", 126) in ps: n = max(n, 4)
        if ck == "salu" and ps & c.src: n = max(n, 1)
    if pk == "salu":
        if ("s", 124) in p.dst and ck == "vmem" and getattr(c, "lds", False): n = max(n, 1)
    if pk == "vmem" and getattr(p, "wide_store", False):
        if p.sdata & c.dst:
            n = max(n, 2 if ck in ("valu", "mfma", "sgemm") else 1)
    if pk == "mfma":
        P = p.passes
        t_ab = {2: 5, 4: 8, 8: 12, 16: 20}[P]
        t_ov = {2: 4, 4: 6, 8: 10, 16: 18}[P]
        if ck in ("mfma", "sgemm"):
            if p.dst & c.srcC:
                if ck == "mfma" and c.srcC == p.dst and c.passes == P:
                    n = max(n, 2 if P == 2 else 0)
                else:
                    n = max(n, t_ov)
            if p.dst & c.srcAB: n = max(n, t_ab)
            if (p.dst & c.dst) and not (c.dst == p.dst and c.passes == P):
                n = max(n, t_ab)
        if ck in ("valu", "vmem", "ds") and p.dst & (c.src | c.dst): n = max(n, t_ab)
        if ck == "valu" and p.srcC & c.dst: n = max(n, {2: 1, 4: 3, 8: 7, 16: 15}[P])
        if ck in ("vmem", "ds") and p.srcC & c.dst: n = max(n, {2: 1, 4: 3, 8: 7, 16: 15}[P])
    if pk == "sgemm":
        P = p.passes
        t = {2: 4, 4: 6, 8: 10, 16: 18}[P]
        if ck in ("mfma", "sgemm"):
            if p.dst & c.srcC and not (c.srcC == p.dst and ck == "sgemm"):
                n = max(n, {2: 2, 4: 4, 8: 8, 16: 16}[P])
            if p.dst & c.srcAB: n = max(n, t)
        if ck in ("valu", "vmem", "ds") and p.dst & (c.src | c.dst): n = max(n, t)
    return n


def fix_hazards(lines, report=None):
    ins = [Ins(l) for l in lines]
    out = []
    labels = {}
    nnop = 0

    def window_need(hist, c):
        d = 0
        req = 0
        for p in reversed(hist):
            if p.kind is None:
                continue
            r = need(p, c) - d
            if r > req: req = r
            d += p.states()
            if d >= 21: break
        return req

    for c in ins:
        if c.kind is None:
            if c.is_label:
                labels[c.line.split(":")[0].strip()] = len(out)
            out.append(c)
            continue
        r = window_need(out, c)
        while r > 0:
            k = min(r, 16)
            out.append(Ins(f"s_nop {k-1}"))
            nnop += 1
            r -= k
        out.append(c)
    labels = {c.line.split(":")[0].strip(): i for i, c in enumerate(out) if c.is_label}
    for i, c in enumerate(out):
        if c.kind == "salu" and (c.op == "s_branch" or c.op.startswith("s_cbranch")):
            tgt = c.line.split(";")[0].split()[1]
            if tgt not in labels:
                continue
            hist = [p for p in out[max(0, i - 40): i + 1]]
            j = labels[tgt]
            d = 0
            h = list(hist)
            while j < len(out) and d < 21:
                t = out[j]
                if t.kind is not None:
                    r = window_need(h, t)
                    if r > 0:
                        nl = [x.line for x in out]
                        nl.insert(j, f"s_nop {min(r,16)-1}")
                        if report is not None:
                            report.setdefault("edge", []).append((c.line, t.line, r))
                        return fix_hazards(nl, report)
                    h.append(t)
                    d += t.states()
                    if t.op in ("s_branch", "s_endpgm"):
                        break
                j += 1
    if report is not None:
        report["nops"] = nnop
    return [c.line for c in out]


HEADER = """; Kernarg layout for this problem (88 bytes, ptrs only, base s[0:1]):
;   offset  80: d_ws      268435456 bytes workspace (unspecified values whenever your kernel or launch list starts; a list's later launches find what earlier ones wrote)
"""


def build_file(kernels, single=False):
    o = [HEADER.rstrip("\n")]
    for k in kernels:
        g = k["grid"]; b = k["block"]
        if single:
            o.append(f"; @launch grid=({g},1,1) block=({b},1,1) lds={k['lds']}")
        else:
            o.append(f"; @launch kernel={k['name']} grid=({g},1,1) block=({b},1,1) lds={k['lds']}")
    o.append('.amdgcn_target "amdgcn-amd-amdhsa--gfx950"')
    o.append(".text")
    seen = set()
    for k in kernels:
        if k["name"] in seen: continue
        seen.add(k["name"])
        o.append(f".globl {k['name']}")
        o.append(".p2align 8")
        o.append(f".type {k['name']},@function")
        o.append(f"{k['name']}:")
        for ln in k["lines"]:
            o.append(ln if ln.endswith(":") else "    " + ln)
    o.append('.section .rodata,"a"')
    seen = set()
    for k in kernels:
        if k["name"] in seen: continue
        seen.add(k["name"])
        o.append(".p2align 6")
        o.append(f".amdhsa_kernel {k['name']}")
        o.append(f"  .amdhsa_next_free_vgpr {k['vgpr']}")
        o.append(f"  .amdhsa_next_free_sgpr {k.get('sgpr', 102)}")
        o.append(f"  .amdhsa_accum_offset {k.get('accum', (min(k['vgpr'],256)+3)//4*4)}")
        o.append("  .amdhsa_group_segment_fixed_size 0")
        o.append("  .amdhsa_kernarg_size 88")
        o.append("  .amdhsa_user_sgpr_count 2")
        o.append("  .amdhsa_user_sgpr_kernarg_segment_ptr 1")
        o.append("  .amdhsa_system_sgpr_workgroup_id_x 1")
        o.append(".end_amdhsa_kernel")
    return "\n".join(o) + "\n"
```

```python
import sys, math, struct
sys.path.insert(0, "gen")
from asmlib import *

def f32(x):
    return "0x%08x" % struct.unpack("<I", struct.pack("<f", x))[0]

LOG2E = 1.4426950408889634
C0 = -2.0 * LOG2E * math.sqrt(2.0 / math.pi)

WS_A2 = 0
WS_ST = 0x00A00000
WS_KVP = 0x00A10000
WS_QB = 0x00C00000
WS_TS = 0x00E00000
WS_SIZE = 0x01000000
SLOT = 53248
WOFF = 32768
L_CS = 2 * SLOT + WOFF
L_KVB = L_CS + 6144
L_KVRED = 3 * SLOT
SPIN = 20000

MF = "v_mfma_f32_32x32x16_bf16"


def srd(A, d, lo, hi, size):
    A(f"s_mov_b32 s{d}, s{lo}\ns_and_b32 s{d+1}, s{hi}, 0xffff\ns_mov_b32 s{d+2}, {size}\ns_mov_b32 s{d+3}, 0x20000")


def interleave(main, fill):
    out = []
    n = len(main)
    k = 0
    for i, m in enumerate(main):
        out.append(m)
        tgt = (len(fill) * (i + 1) + n - 1) // n
        while k < tgt:
            out.append(fill[k]); k += 1
    return out


def wave_sum(A, r, sdst):
    for sh in (1, 2, 4, 8):
        A(f"v_add_f32_dpp v{r}, v{r}, v{r} row_shr:{sh} row_mask:0xf bank_mask:0xf bound_ctrl:0")
    A(f"v_add_f32_dpp v{r}, v{r}, v{r} row_bcast:15 row_mask:0xa bank_mask:0xf")
    A(f"v_add_f32_dpp v{r}, v{r}, v{r} row_bcast:31 row_mask:0xc bank_mask:0xf")
    A(f"v_readlane_b32 s{sdst}, v{r}, 63")


def softmax16(A, P, OUT, T, sL):
    A(f"v_max3_f32 v{T}, v{P}, v{P+1}, v{P+2}")
    A(f"v_max3_f32 v{T+1}, v{P+3}, v{P+4}, v{P+5}")
    A(f"v_max3_f32 v{T+2}, v{P+6}, v{P+7}, v{P+8}")
    A(f"v_max3_f32 v{T+3}, v{P+9}, v{P+10}, v{P+11}")
    A(f"v_max3_f32 v{T}, v{T}, v{P+12}, v{P+13}")
    A(f"v_max3_f32 v{T+1}, v{T+1}, v{P+14}, v{P+15}")
    A(f"v_max3_f32 v{T}, v{T}, v{T+2}, v{T+3}")
    A(f"v_max_f32 v{T}, v{T}, v{T+1}")
    A(f"v_mul_f32 v{T}, {f32(-LOG2E)}, v{T}")
    for r in range(0, 16, 2):
        A(f"v_pk_fma_f32 {v(P+r,2)}, {v(P+r,2)}, {s(sL,2)}, {v(T,2)} op_sel_hi:[1,1,0]")
    for r in range(16):
        A(f"v_exp_f32 v{P+r}, v{P+r}")
    for q in range(4):
        A(f"v_pk_add_f32 {v(T+2+2*q,2)}, {v(P+4*q,2)}, {v(P+4*q+2,2)}")
    A(f"v_pk_add_f32 {v(T+2,2)}, {v(T+2,2)}, {v(T+4,2)}")
    A(f"v_pk_add_f32 {v(T+6,2)}, {v(T+6,2)}, {v(T+8,2)}")
    A(f"v_pk_add_f32 {v(T+2,2)}, {v(T+2,2)}, {v(T+6,2)}")
    A(f"v_add_f32 v{T}, v{T+2}, v{T+3}")
    A(f"v_rcp_f32 v{T}, v{T}")
    for r in range(0, 16, 2):
        A(f"v_pk_mul_f32 {v(P+r,2)}, {v(P+r,2)}, {v(T,2)} op_sel_hi:[1,0]")
    for r in range(0, 16, 2):
        A(f"v_cvt_pk_bf16_f32 v{OUT+r//2}, v{P+r}, v{P+r+1}")


class Stamp:
    def __init__(self, on, base):
        self.on = on; self.n = 0; self.base = base

    def __call__(self, A):
        if self.on:
            r = self.base + 2 * self.n
            assert r + 1 < 102
            A(f"s_memtime s[{r}:{r+1}]")
            self.n += 1

    def dump(self, A, srd_ws, sw, kidx, vt):
        if not self.on:
            return
        A("s_waitcnt lgkmcnt(0)")
        A(f"s_lshl_b32 s3, s2, 3\ns_add_u32 s3, s3, s{sw}\ns_lshl_b32 s3, s3, 6\ns_add_u32 s3, s3, {WS_TS + kidx * 0x20000}")
        A("s_mov_b64 exec, 1")
        for q in range(self.n):
            r = self.base + 2 * q
            A(f"v_mov_b32 v{vt}, s{r}\nv_mov_b32 v{vt+1}, s{r+1}\nv_mov_b32 v{vt+2}, {q*8}")
            A(f"buffer_store_dwordx2 {v(vt,2)}, v{vt+2}, {s(srd_ws,4)}, s3 offen")
        A("s_mov_b64 exec, -1")


def k1(opt):
    A = Asm()
    st = Stamp(opt.get("stamps"), 86)
    SC = " sc1" if opt.get("a2_sc1", True) else ""
    SX, SP0, SP1, SKV, SWS, SDB, SPH = 4, 8, 12, 16, 20, 24, 28
    sI, sJ, sW, sC, sCC, sXO, sPO, sKO, sSTR, sSLOT, sDLT, sB, sG, sT, sMASK = 32, 33, 34, 35, 36, 37, 38, 39, 40, 41, 44, 45, 46, 47, 48
    sMX, sMW = 42, 43
    sL = 56
    sSPIN = 60
    sH0, sH1, sQ, sKVP, sO = 49, 50, 51, 54, 55
    ACC = [16, 32, 48, 64, 80]
    F = [96, 116, 136, 156]
    XA0, XA1, PA, KA = 176, 180, 184, 188
    VX, VP, VKV = 192, 196, 197
    CS = 198
    CT = 204
    WPH = 208
    WRAW = 212
    ST0, ST1 = 220, 222
    VL16, VCSW, VCSR, VPOLL, VSTA, VKVP, VL4 = 224, 225, 226, 227, 228, 229, 230
    VIMW, VTR, VRED, VKVB = 231, 232, 233, 234
    QR = 236

    A("s_cmp_ge_u32 s2, 256\ns_cbranch_scc1 L1_done")
    st(A)
    A("s_load_dwordx16 s[64:79], s[0:1], 0")
    A("s_load_dwordx4 s[80:83], s[0:1], 64")
    A("s_load_dwordx2 s[84:85], s[0:1], 80")
    A("v_lshrrev_b32 v2, 6, v0\nv_and_b32 v1, 63, v0")
    A(f"v_readfirstlane_b32 s{sW}, v2")
    A(f"""s_and_b32 s3, s2, 7
          s_lshr_b32 s61, s2, 3
          s_and_b32 s{sI}, s3, 1
          s_lshl_b32 s{sI}, s{sI}, 2
          s_and_b32 s62, s61, 3
          s_add_u32 s{sI}, s{sI}, s62
          s_lshr_b32 s63, s3, 1
          s_lshr_b32 s62, s61, 2
          s_lshl_b32 s{sJ}, s63, 3
          s_add_u32 s{sJ}, s{sJ}, s62
          s_and_b32 s{sG}, s{sW}, 3
          s_lshr_b32 s{sT}, s{sW}, 2
          s_movk_i32 s{sSTR}, 3584
          s_cmp_eq_u32 s62, 7
          s_cselect_b32 s{sB}, 1, 0
          s_cselect_b32 s{sSTR}, 3072, s{sSTR}""")
    A(f"""s_mul_i32 s61, s63, 7
          s_add_u32 s61, s61, s62
          s_lshl_b32 s58, s61, 7
          s_lshl_b32 s59, s63, 8
          s_cmp_eq_u32 s{sB}, 1
          s_cselect_b32 s58, s59, s58
          s_add_u32 s59, s59, 128
          s_cmp_eq_u32 s{sB}, 1
          s_cselect_b32 s59, s59, s58""")
    A(f"""v_lshrrev_b32 v2, 3, v1
          v_and_b32 v3, 7, v1
          v_lshrrev_b32 v4, 4, v1
          v_xor_b32 v5, v3, v4
          v_lshlrev_b32 v5, 4, v5
          s_lshl_b32 s3, s{sW}, 5
          v_add_u32 v6, s3, v2
          v_lshl_add_u32 v{VX}, v6, 10, v5
          v_xor_b32 v{VX+1}, 64, v{VX}
          v_add_u32 v{VX+2}, 14336, v{VX}
          v_add_u32 v{VX+3}, 21504, v{VX+1}
          v_add_u32 v{VX+1}, 7168, v{VX+1}
          s_lshl_b32 s3, s{sW}, 3
          v_add_u32 v6, s3, v2
          v_mul_lo_u32 v6, v6, s{sSTR}
          v_and_b32 v7, 1, v4
          v_lshlrev_b32 v5, 2, v7
          v_xor_b32 v5, v5, v3
          v_lshl_add_u32 v{VP}, v5, 4, v6
          v_bfe_u32 v6, v1, 2, 3
          v_add_u32 v6, s3, v6
          v_mul_u32_u24 v6, 3072, v6
          v_and_b32 v5, 1, v1
          v_lshl_add_u32 v6, v5, 4, v6
          v_bfe_u32 v5, v1, 1, 1
          v_lshl_add_u32 v{VKV}, v5, 10, v6
          v_lshlrev_b32 v{VL16}, 4, v1
          v_lshlrev_b32 v{VL4}, 2, v1""")
    A(f"""v_and_b32 v8, 31, v1
          v_lshrrev_b32 v9, 5, v1
          v_bfe_u32 v10, v1, 2, 2
          v_and_b32 v11, 3, v1
          v_bfe_u32 v5, v1, 1, 3
          v_xor_b32 v5, v5, v9
          v_lshlrev_b32 v5, 4, v5
          v_lshl_add_u32 v5, v8, 7, v5
          s_lshl_b32 s3, s{sW}, 12
          s_lshl_b32 s62, s{sG}, 5
          s_or_b32 s3, s3, s62
          v_xor_b32 v{XA0}, s3, v5""")
    for p in range(1, 4):
        A(f"v_xor_b32 v{XA0+p}, {32*p}, v{XA0}")
    for p in range(4):
        A(f"v_xor_b32 v{XA1+p}, 0x4000, v{XA0+p}")
    A(f"""v_lshlrev_b32 v12, 5, v7
          v_lshl_add_u32 v12, v11, 3, v12
          v_mul_u32_u24 v13, 2560, v9
          v_add_u32 v13, v13, v12
          v_lshrrev_b32 v5, 1, v10
          v_xor_b32 v5, s{sT}, v5
          v_lshlrev_b32 v5, 6, v5
          v_lshl_add_u32 v5, v10, 7, v5
          v_add_u32 v5, v5, v13
          v_lshl_add_u32 v6, v10, 6, v13""")
    for p in range(4):
        A(f"""s_xor_b32 s3, s{sG}, {p}
              s_mul_i32 s3, s3, 5120
              s_add_u32 s3, s3, {WOFF}
              v_add_u32 v{PA+p}, s3, v5
              s_add_u32 s3, s3, 2048
              v_add_u32 v{KA+p}, s3, v6""")
    A(f"""v_lshrrev_b32 v5, 3, v8
          v_lshl_add_u32 v5, v5, 2, v11
          v_lshlrev_b32 v5, 1, v5
          v_lshl_add_u32 v14, v9, 7, v5""")
    A(f"""s_lshl_b32 s3, s{sI}, 1
          s_add_u32 s{sCC}, s{sJ}, s3
          s_and_b32 s{sCC}, s{sCC}, 7
          s_lshl_b32 s{sSTR}, s{sSTR}, 6
          s_lshl_b32 s{sMX}, s{sW}, 12
          s_mul_i32 s{sMW}, s{sW}, 2560
          s_add_u32 s{sMW}, s{sMW}, {WOFF}""")
    A("s_waitcnt lgkmcnt(0)")
    A(f"s_lshl_b32 s3, s{sI}, 18\ns_add_u32 s64, s64, s3\ns_addc_u32 s65, s65, 0")
    srd(A, SX, 64, 65, 262144)
    A(f"s_lshl_b32 s3, s{sJ}, 3\ns_add_u32 s3, s3, s{sW}\ns_lshl_b32 s62, s3, 10")
    A(f"buffer_load_dwordx4 v[2:5], v{VL16}, {s(SX,4)}, s62 offen")
    A(f"s_lshl_b32 s52, s{sI}, 8\ns_add_u32 s52, s52, s3\ns_lshl_b32 s52, s52, 3\ns_add_u32 s52, s52, {WS_ST}")
    A(f"""s_cmp_eq_u32 s{sB}, 1
          s_cselect_b32 s74, s66, s74
          s_cselect_b32 s75, s67, s75
          s_cselect_b32 s76, s66, s76
          s_cselect_b32 s77, s67, s77
          s_add_u32 s74, s74, s58
          s_addc_u32 s75, s75, 0
          s_add_u32 s76, s76, s59
          s_addc_u32 s77, s77, 0
          s_sub_u32 s76, s76, 1024
          s_subb_u32 s77, s77, 0
          s_lshl_b32 s3, s{sJ}, 5
          s_add_u32 s66, s66, s3
          s_addc_u32 s67, s67, 0
          s_sub_u32 s66, s66, 1024
          s_subb_u32 s67, s67, 0""")
    srd(A, SP0, 74, 75, 0); srd(A, SP1, 76, 77, 0); srd(A, SKV, 66, 67, 0)
    A(f"""s_lshl_b32 s62, s{sSTR}, 3
          s_sub_u32 s{SP0+2}, s62, s58
          s_sub_u32 s{SP1+2}, s62, s59
          s_add_u32 s{SP1+2}, s{SP1+2}, 1024
          s_sub_u32 s{SKV+2}, {512*3072+1024}, s3""")
    srd(A, SWS, 84, 85, WS_SIZE); srd(A, SDB, 82, 83, 256); srd(A, SPH, 68, 69, 16384)

    def group_offsets():
        A(f"""s_lshl_b32 s{sXO}, s{sCC}, 7
              s_mul_i32 s{sPO}, s{sCC}, s{sSTR}
              s_mul_i32 s{sKO}, s{sCC}, {64*3072}
              s_add_u32 s{sCC}, s{sCC}, 1
              s_and_b32 s{sCC}, s{sCC}, 7""")

    def dma_x(u):
        return f"buffer_load_dwordx4 v{VX+u}, {s(SX,4)}, s{sXO} offen offset:{1024*u} lds"
    dma_p0 = f"buffer_load_dwordx4 v{VP}, {s(SP0,4)}, s{sPO} offen lds"
    dma_p1 = f"buffer_load_dwordx4 v{VP}, {s(SP1,4)}, s{sPO} offen offset:1024 lds"
    dma_kv = ["s_mov_b64 exec, 0xffffffff" if False else "s_mov_b32 exec_hi, 0",
              f"buffer_load_dwordx4 v{VKV}, {s(SKV,4)}, s{sKO} offen offset:2048 lds",
              "s_mov_b32 exec_hi, -1"]

    A(f"s_lshl_b32 s3, s{sJ}, 9")
    for jj in range(8):
        A(f"buffer_load_ushort v{WRAW+jj}, v14, {s(SPH,4)}, s3 offen offset:{((jj&3)+8*(jj>>2))*32}")
    A(f"""s_lshl_b32 s{sQ}, s{sI}, 5
          s_add_u32 s{sQ}, s{sQ}, s{sJ}
          s_lshl_b32 s{sQ}, s{sQ}, 3
          s_add_u32 s{sQ}, s{sQ}, s{sW}
          s_lshl_b32 s{sQ}, s{sQ}, 10
          s_add_u32 s{sQ}, s{sQ}, {WS_QB}
          s_lshl_b32 s{sKVP}, s{sJ}, 15
          s_add_u32 s{sKVP}, s{sKVP}, {WS_KVP}
          s_lshl_b32 s53, s{sI}, 12
          s_add_u32 s53, s53, s{sKVP}
          v_mov_b32 v{QR}, -1
          v_mov_b32 v{QR+1}, -1
          v_mov_b32 v{QR+2}, -1
          v_mov_b32 v{QR+3}, -1
          v_lshlrev_b32 v{VKVP}, 4, v0
          v_mov_b32 v15, 0x7f000000
          v_cmp_gt_u32 vcc, 136, v0
          v_cndmask_b32 v{VKVP}, v15, v{VKVP}, vcc""")
    A(f"buffer_store_dwordx4 {v(QR,4)}, v{VL16}, {s(SWS,4)}, s{sQ} offen sc1")
    A(f"buffer_store_dwordx4 {v(QR,4)}, v{VKVP}, {s(SWS,4)}, s53 offen sc1")
    for gi in range(3):
        group_offsets()
        A(f"s_add_u32 m0, s{sMX}, {gi*SLOT}")
        for u in range(4):
            A(dma_x(u))
        A(f"s_add_u32 m0, s{sMW}, {gi*SLOT}")
        A(dma_p0); A(dma_p1)
        for x in dma_kv: A(x)
    st(A)
    for r in range(16, 96):
        A(f"v_mov_b32 v{r}, 0")
    for r in range(6):
        A(f"v_mov_b32 v{CS+r}, 0")
    A(f"""v_lshlrev_b32 v15, 4, v0
          v_min_u32 v15, {167*16}, v15
          v_add_u32 v15, {L_KVRED}, v15
          ds_write_b128 v15, v[16:19]""")
    A(f"""s_mul_i32 s3, s{sT}, 3072
          s_add_u32 s3, s3, {L_CS}
          v_lshlrev_b32 v15, 5, v8
          v_lshl_add_u32 v15, v9, 4, v15
          v_add_u32 v{VCSR}, s3, v15
          s_lshl_b32 s62, s{sG}, 2
          v_add_u32 v{VCSW}, s62, v{VCSR}
          s_mul_i32 s3, s{sT}, {SLOT}
          s_lshl_b32 s62, s{sG}, 12
          s_add_u32 s3, s3, s62
          s_add_u32 s3, s3, {WOFF}
          v_lshlrev_b32 v15, 6, v8
          v_lshl_add_u32 v15, v9, 4, v15
          v_add_u32 v{VIMW}, s3, v15
          v_lshl_add_u32 v15, v9, 3, v10
          v_lshl_add_u32 v15, v15, 6, v12
          v_add_u32 v{VTR}, s3, v15
          v_lshlrev_b32 v15, 9, v9
          v_lshl_add_u32 v15, v8, 2, v15
          v_add_u32 v{VRED}, {L_KVRED}, v15
          v_bfe_u32 v15, v8, 2, 1
          v_lshl_add_u32 v15, v15, 3, v11
          v_bfe_u32 v6, v8, 3, 1
          v_lshl_add_u32 v15, v6, 2, v15
          v_cmp_gt_u32 vcc, 16, v8
          v_cndmask_b32 v15, 16, v15, vcc
          v_lshlrev_b32 v15, 6, v15
          v_lshl_add_u32 v15, v9, 5, v15
          v_add_u32 v{VKVB}, {L_KVB}, v15
          v_lshlrev_b32 v{VSTA}, 3, v8
          v_bfe_u32 v15, v8, 2, 1
          v_mul_u32_u24 v15, 0x8000, v15
          v_lshl_or_b32 v15, v15, 16, v15""")
    A(f"""s_lshl_b32 s3, s{sI}, 3
          s_add_u32 s62, s3, s{sW}
          s_mul_i32 s62, s62, 144
          s_add_u32 s{sO}, s62, s{sJ}
          s_add_u32 s{sO}, s{sO}, 112
          s_lshl_b32 s{sO}, s{sO}, 10
          s_lshl_b32 s61, s61, 2
          s_lshl_b32 s58, s{sT}, 1
          s_add_u32 s61, s61, s58
          s_add_u32 s{sH0}, s62, s61
          s_lshl_b32 s{sH0}, s{sH0}, 10
          s_xor_b32 s62, s{sW}, 4
          s_add_u32 s62, s3, s62
          s_mul_i32 s62, s62, 144
          s_add_u32 s{sH1}, s62, s61
          s_lshl_b32 s{sH1}, s{sH1}, 10
          s_mov_b32 s{sL}, {f32(LOG2E)}
          s_mov_b32 s{sL+1}, {f32(LOG2E)}
          s_cmp_eq_u32 s{sW}, 0
          s_cselect_b32 s{sMASK}, 2, 0
          s_or_b32 s{sMASK}, s{sMASK}, 0x60
          s_mov_b32 s{sC}, 0
          s_mov_b32 s{sSLOT}, 0""")
    A(f"""s_cmp_eq_u32 s{sB}, 0
          s_cbranch_scc1 L1_notB0
          s_lshl_b32 s3, s{sI}, 5
          s_lshl_b32 s63, s63, 3
          s_add_u32 s3, s3, s63
          s_add_u32 s3, s3, s58
          s_lshl_b32 s3, s3, 3
          s_add_u32 s3, s3, s{sW}
          s_lshl_b32 s3, s3, 10
          s_add_u32 s{sH0}, s3, {WS_QB}
          s_xor_b32 s{sH1}, s{sH0}, 0x1000
          L1_notB0:""")
    E = 96
    A("s_waitcnt vmcnt(31)")
    for q in range(4):
        A(f"v_lshlrev_b32 v{E+2*q}, 16, v{2+q}\nv_and_b32 v{E+2*q+1}, 0xffff0000, v{2+q}")
    A(f"""v_add_f32 v2, v{E}, v{E+1}
          v_add_f32 v3, v{E+2}, v{E+3}
          v_add_f32 v4, v{E+4}, v{E+5}
          v_add_f32 v5, v{E+6}, v{E+7}
          v_add_f32 v2, v2, v3
          v_add_f32 v4, v4, v5
          v_add_f32 v2, v2, v4""")
    wave_sum(A, 2, 3)
    A(f"v_mov_b32 v3, {f32(-1.0/512)}\nv_mul_f32 v3, s3, v3")
    for q in range(8):
        A(f"v_add_f32 v{E+q}, v{E+q}, v3")
    A(f"v_mul_f32 v2, v{E}, v{E}\nv_mul_f32 v4, v{E+1}, v{E+1}")
    for q in range(2, 8, 2):
        A(f"v_fmac_f32 v2, v{E+q}, v{E+q}\nv_fmac_f32 v4, v{E+q+1}, v{E+q+1}")
    A("v_add_f32 v2, v2, v4")
    wave_sum(A, 2, 3)
    A(f"""v_mov_b32 v2, {f32(1.0/512)}
          v_mul_f32 v2, s3, v2
          v_cvt_pk_bf16_f32 v4, v3, v3
          v_cvt_pk_bf16_f32 v2, v2, v2
          v_lshlrev_b32 v2, 16, v2
          v_add_f32 v2, {f32(1e-5)}, v2
          v_cvt_pk_bf16_f32 v2, v2, v2
          v_lshlrev_b32 v2, 16, v2
          v_sqrt_f32 v2, v2
          v_cvt_pk_bf16_f32 v2, v2, v2
          v_lshlrev_b32 v2, 16, v2
          v_rcp_f32 v5, v2
          v_mov_b32 v6, 0
          s_mov_b64 exec, 1
          buffer_store_dwordx2 v[4:5], v6, {s(SWS,4)}, s52 offen sc1
          s_mov_b64 exec, -1""")
    A("s_waitcnt vmcnt(24)")
    for q in range(4):
        A(f"v_lshl_or_b32 v{WPH+q}, v{WRAW+2*q+1}, 16, v{WRAW+2*q}\nv_xor_b32 v{WPH+q}, v15, v{WPH+q}")
    A("s_mov_b64 vcc, 0")
    A("s_waitcnt vmcnt(15) lgkmcnt(0)")
    A("s_barrier")
    st(A)

    def reads(pos):
        f = F[pos]
        return [f"ds_read_b128 {v(f,4)}, v{XA0+pos}",
                f"ds_read_b64_tr_b16 {v(f+8,2)}, v{KA+pos}",
                f"ds_read_b64_tr_b16 {v(f+10,2)}, v{KA+pos} offset:256",
                f"ds_read_b64_tr_b16 {v(f+12,2)}, v{PA+pos}",
                f"ds_read_b64_tr_b16 {v(f+14,2)}, v{PA+pos} offset:512",
                f"ds_read_b128 {v(f+4,4)}, v{XA1+pos}",
                f"ds_read_b64_tr_b16 {v(f+16,2)}, v{PA+pos} offset:1024",
                f"ds_read_b64_tr_b16 {v(f+18,2)}, v{PA+pos} offset:1536"]

    def mfmas(pos):
        f = F[pos]
        return [f"{MF} {v(ACC[0],16)}, {v(f+8,4)}, {v(f,4)}, {v(ACC[0],16)}",
                f"{MF} {v(ACC[1],16)}, {v(f+12,4)}, {v(f,4)}, {v(ACC[1],16)}",
                f"{MF} {v(ACC[2],16)}, {v(f+12,4)}, {v(f+4,4)}, {v(ACC[2],16)}",
                f"{MF} {v(ACC[3],16)}, {v(f+16,4)}, {v(f,4)}, {v(ACC[3],16)}",
                f"{MF} {v(ACC[4],16)}, {v(f+16,4)}, {v(f+4,4)}, {v(ACC[4],16)}"]

    def colsum(tile):
        o = []
        for q in range(4):
            r = F[0] + 8 + 4 * tile + q
            t = CT + 2 * (q & 1)
            o += [f"v_lshlrev_b32 v{t}, 16, v{r}", f"v_and_b32 v{t+1}, 0xffff0000, v{r}",
                  f"v_add_f32 v{CS+2*tile}, v{CS+2*tile}, v{t}", f"v_add_f32 v{CS+2*tile+1}, v{CS+2*tile+1}, v{t+1}"]
        return o

    for x in reads(0): A(x)
    A("L1_loop:")
    nlab = [0]

    def guarded(lst):
        nlab[0] += 1
        L = f"L1_g{nlab[0]}"
        return [f"s_cbranch_vccz {L}"] + lst + [f"{L}:"]

    for pos in range(3):
        rd = reads(pos + 1)
        mf = mfmas(pos)
        cs = colsum(pos)
        if pos == 0:
            d = [guarded([dma_x(2)]), guarded([dma_x(3)])]
        elif pos == 1:
            d = [guarded([f"s_add_u32 m0, s{sMW}, s{sSLOT}", "s_nop 0", dma_p0]), guarded([dma_p1])]
        else:
            d = [guarded(dma_kv), []]
        A("s_waitcnt lgkmcnt(0)")
        A(mf[0])
        for x in rd[0:3]: A(x)
        for x in cs[0:2]: A(x)
        A(mf[1])
        for x in rd[3:6]: A(x)
        for x in cs[2:4]: A(x)
        A(mf[2])
        for x in rd[6:8]: A(x)
        for x in cs[4:8]: A(x)
        A(mf[3])
        for x in d[0]: A(x)
        for x in cs[8:12]: A(x)
        A(mf[4])
        for x in d[1]: A(x)
        for x in cs[12:16]: A(x)
    A(f"""s_mul_i32 s3, s{sC}, 43
          s_lshr_b32 s3, s3, 7
          s_mul_i32 s3, s3, 3
          s_sub_u32 s3, s{sC}, s3
          s_mul_i32 s{sSLOT}, s3, {SLOT}
          s_mov_b32 s{sDLT}, {SLOT}
          s_cmp_eq_u32 s3, 2
          s_cselect_b32 s{sDLT}, {-2*SLOT}, s{sDLT}""")
    for r in range(XA0, XA0 + 16):
        A(f"v_add_u32 v{r}, s{sDLT}, v{r}")
    A(f"s_cmp_ge_u32 s{sC}, 6\ns_cbranch_scc1 L1_pre")
    A("s_waitcnt vmcnt(7) lgkmcnt(0)")
    A("L1_pre_ret:")
    A("s_barrier")
    mf = mfmas(3); rd = reads(0)
    A(mf[0])
    for x in rd[0:3]: A(x)
    A(f"s_bitcmp1_b32 s{sMASK}, s{sC}\ns_cbranch_scc1 L1_post")
    A("L1_post_ret:")
    A(mf[1])
    for x in rd[3:6]: A(x)
    group_offsets()
    A(f"s_cmp_lt_u32 s{sC}, 5\ns_cselect_b64 vcc, -1, 0")
    A(mf[2])
    for x in rd[6:8]: A(x)
    A(f"s_add_u32 m0, s{sMX}, s{sSLOT}")
    A(mf[3])
    for x in guarded([dma_x(0)]): A(x)
    A(mf[4])
    for x in guarded([dma_x(1)]): A(x)
    A(f"s_add_u32 s{sC}, s{sC}, 1\ns_cmp_lt_u32 s{sC}, 8\ns_cbranch_scc1 L1_loop")
    st(A)
    A("s_waitcnt lgkmcnt(0)")
    for t in range(3):
        A(f"ds_read_b128 {v(96+4*t,4)}, v{VCSR} offset:{1024*t}")
    A("s_waitcnt vmcnt(0)")
    for q in range(4):
        A(f"v_mov_b32 v{108+q}, v{ST0}\nv_mov_b32 v{112+q}, v{ST1}")
    A("s_waitcnt lgkmcnt(0)")
    A(f"""{MF} {v(ACC[0],16)}, v[96:99], v[108:111], {v(ACC[0],16)}
          {MF} {v(ACC[1],16)}, v[100:103], v[108:111], {v(ACC[1],16)}
          {MF} {v(ACC[2],16)}, v[100:103], v[112:115], {v(ACC[2],16)}
          {MF} {v(ACC[3],16)}, v[104:107], v[108:111], {v(ACC[3],16)}
          {MF} {v(ACC[4],16)}, v[104:107], v[112:115], {v(ACC[4],16)}""")

    def scale_cvt(acc, stp, out):
        for r in range(0, 16, 2):
            A(f"v_pk_mul_f32 {v(acc+r,2)}, {v(acc+r,2)}, {v(stp,2)} op_sel:[0,1] op_sel_hi:[1,1]")
        for r in range(0, 16, 2):
            A(f"v_cvt_pk_bf16_f32 v{out+r//2}, v{acc+r}, v{acc+r+1}")

    A(f"s_cmp_eq_u32 s{sB}, 0\ns_cbranch_scc1 L1_kv")
    for n, (acc, stp, so, add) in enumerate(((ACC[1], ST0, sH0, 0), (ACC[2], ST1, sH1, 0), (ACC[3], ST0, sH0, 32768), (ACC[4], ST1, sH1, 32768))):
        o = 116 + 8 * n
        scale_cvt(acc, stp, o)
        A(f"s_add_u32 s3, s{so}, {add}\ns_add_u32 s62, s{so}, {add+8192}")
        A(f"buffer_store_dwordx4 {v(o,4)}, v{VL16}, {s(SWS,4)}, s3 offen sc1")
        A(f"buffer_store_dwordx4 {v(o+4,4)}, v{VL16}, {s(SWS,4)}, s62 offen sc1")
    A("L1_kv:")
    KB, D2, PH, TT = 96, 160, 104, 176
    scale_cvt(ACC[0], ST0, KB)
    A(f"{MF} {v(D2,16)}, {v(WPH,4)}, {v(KB,4)}, 0")
    A(f"ds_write_b128 v{VIMW}, {v(KB+4,4)} offset:2048")
    for q in range(4):
        A(f"v_mov_b32 v{112+q}, 0x3f803f80")
    A(f"ds_write_b128 v{VIMW}, v[112:115] offset:{2048+32}")
    A(f"v_lshl_add_u32 v{VIMW}, v9, 4, v{VIMW}")
    softmax16(A, D2, PH, TT, sL)
    A(f"ds_write_b128 v{VIMW}, {v(PH,4)}\nds_write_b128 v{VIMW}, {v(PH+4,4)} offset:16")
    A("s_waitcnt lgkmcnt(0)")
    for ks in range(2):
        for sb in range(2):
            A(f"ds_read_b64_tr_b16 {v(16+8*ks+2*sb,2)}, v{VTR} offset:{2048+1024*ks+256*sb}")
        for sb in range(2):
            A(f"ds_read_b64_tr_b16 {v(20+8*ks+2*sb,2)}, v{VTR} offset:{1024*ks+256*sb}")
    A("s_waitcnt lgkmcnt(4)")
    A(f"{MF} {v(D2,16)}, v[16:19], v[20:23], 0")
    A("s_waitcnt lgkmcnt(0)")
    A(f"{MF} {v(D2,16)}, v[24:27], v[28:31], {v(D2,16)}")
    for r in range(9):
        A(f"ds_add_f32 v{VRED}, v{D2+r} offset:{((r&3)+8*(r>>2))*128}")
    A("s_waitcnt lgkmcnt(0)\ns_barrier")
    A(f"s_cmp_gt_u32 s{sW}, 2\ns_cbranch_scc1 L1_nopub")
    A(f"""v_lshlrev_b32 v15, 4, v0
          v_add_u32 v15, {L_KVRED}, v15
          ds_read_b128 v[16:19], v15
          s_waitcnt lgkmcnt(0)
          buffer_store_dwordx4 v[16:19], v{VKVP}, {s(SWS,4)}, s53 offen sc1
          L1_nopub:""")
    st(A)

    def gelu(G, U, stp, H):
        K, R, T = 20, 22, 160
        A(f"""v_mul_f32 v{K+1}, {f32(C0)}, v{stp+1}
              v_mul_f32 v{R}, v{stp+1}, v{stp+1}
              v_mul_f32 v{K}, {f32(0.044715)}, v{R}
              v_mul_f32 v{K}, v{K}, v{K+1}
              v_rcp_f32 v{R}, v{R}""")
        for r in range(0, 16, 2):
            A(f"v_pk_mul_f32 {v(T+r,2)}, {v(G+r,2)}, {v(G+r,2)}")
        for r in range(0, 16, 2):
            A(f"v_pk_fma_f32 {v(T+r,2)}, {v(T+r,2)}, {v(K,2)}, {v(K,2)} op_sel:[0,0,1] op_sel_hi:[1,0,1]")
        for r in range(0, 16, 2):
            A(f"v_pk_mul_f32 {v(T+r,2)}, {v(T+r,2)}, {v(G+r,2)}")
        for r in range(16):
            A(f"v_exp_f32 v{T+r}, v{T+r}")
        for r in range(0, 16, 2):
            A(f"v_pk_fma_f32 {v(T+r,2)}, {v(T+r,2)}, {v(R,2)}, {v(R,2)} op_sel_hi:[1,0,0]")
        for r in range(16):
            A(f"v_rcp_f32 v{T+r}, v{T+r}")
        for r in range(0, 16, 2):
            A(f"v_pk_mul_f32 {v(G+r,2)}, {v(G+r,2)}, {v(U+r,2)}")
        for r in range(0, 16, 2):
            A(f"v_pk_mul_f32 {v(G+r,2)}, {v(G+r,2)}, {v(T+r,2)}")
        for r in range(0, 16, 2):
            A(f"v_cvt_pk_bf16_f32 v{H+r//2}, v{G+r}, v{G+r+1}")

    def hstore(H, so):
        A(f"buffer_store_dwordx4 {v(H,4)}, v{VL16}, {s(SWS,4)}, s{so} offen{SC}")
        A(f"buffer_store_dwordx4 {v(H+4,4)}, v{VL16}, {s(SWS,4)}, s{so} offen offset:1024{SC}")

    A(f"s_cmp_eq_u32 s{sB}, 1\ns_cbranch_scc1 L1_q1")
    gelu(ACC[1], ACC[3], ST0, 96)
    hstore(96, sH0)
    A("L1_q1:")
    qload = f"buffer_load_dwordx4 {v(QR,4)}, v{VL16}, {s(SWS,4)}, s{sQ} offen sc1"
    A(qload)
    A(f"s_cmp_eq_u32 s{sB}, 1\ns_cbranch_scc1 L1_q2")
    gelu(ACC[2], ACC[4], ST1, 104)
    A("L1_q2:")
    st(A)
    A(f"s_mov_b32 s{sSPIN}, {SPIN}")
    A(f"""L1_qchk:
          s_waitcnt vmcnt(0)
          v_max3_u32 v15, v{QR}, v{QR+1}, v{QR+2}
          v_max_u32 v15, v15, v{QR+3}
          v_cmp_eq_u32 vcc, -1, v15
          s_cbranch_vccz L1_qok
          s_sub_u32 s{sSPIN}, s{sSPIN}, 1
          s_cbranch_scc1 L1_qok
          {qload}
          s_branch L1_qchk
          L1_qok:""")
    KP = 112

    def kvp_loads():
        for q in range(8):
            A(f"s_add_u32 s3, s{sKVP}, {4096*q}")
            A(f"buffer_load_dwordx4 {v(KP+4*q,4)}, v{VKVP}, {s(SWS,4)}, s3 offen sc1")

    A(f"s_cmp_gt_u32 s{sW}, 2\ns_cbranch_scc1 L1_nokl")
    kvp_loads()
    A("L1_nokl:")
    A(f"s_cmp_eq_u32 s{sB}, 1\ns_cbranch_scc1 L1_q3")
    hstore(104, sH1)
    A("L1_q3:")
    PQ = 16
    A(f"{MF} {v(D2,16)}, {v(WPH,4)}, {v(QR,4)}, 0")
    softmax16(A, D2, PQ, TT, sL)
    A(f"s_cmp_gt_u32 s{sW}, 2\ns_cbranch_scc1 L1_nosum")
    A(f"s_mov_b32 s{sSPIN}, {SPIN}")
    A("s_waitcnt vmcnt(2)")
    A(f"s_cmp_eq_u32 s{sB}, 0\ns_cbranch_scc1 L1_kchk2")
    A("L1_kchk:\ns_waitcnt vmcnt(0)\nL1_kchk2:")
    A(f"v_max3_u32 v32, v{KP}, v{KP+1}, v{KP+2}\nv_max3_u32 v33, v{KP+3}, v{KP+4}, v{KP+5}")
    for q in range(6, 30, 4):
        A(f"v_max3_u32 v32, v32, v{KP+q}, v{KP+q+1}\nv_max3_u32 v33, v33, v{KP+q+2}, v{KP+q+3}")
    A(f"v_max3_u32 v32, v32, v{KP+30}, v{KP+31}\nv_max_u32 v32, v32, v33")
    A(f"""v_cmp_eq_u32 vcc, -1, v32
          s_cbranch_vccz L1_kok
          s_sub_u32 s{sSPIN}, s{sSPIN}, 1
          s_cbranch_scc1 L1_kok""")
    kvp_loads()
    A("s_branch L1_kchk\nL1_kok:")
    for stp in (16, 8, 4):
        for q in range(0, stp, 2):
            A(f"v_pk_add_f32 {v(KP+q,2)}, {v(KP+q,2)}, {v(KP+stp+q,2)}")
    A(f"""v_cvt_pk_bf16_f32 v32, v{KP}, v{KP+1}
          v_cvt_pk_bf16_f32 v33, v{KP+2}, v{KP+3}
          v_lshlrev_b32 v15, 3, v0
          v_add_u32 v15, {L_KVB}, v15
          ds_write_b64 v15, v[32:33]
          s_waitcnt lgkmcnt(0)
          L1_nosum:
          s_barrier
          ds_read_b128 v[32:35], v{VKVB}
          ds_read_b128 v[36:39], v{VKVB} offset:16
          s_waitcnt lgkmcnt(1)
          {MF} {v(D2,16)}, v[32:35], {v(PQ,4)}, 0
          s_waitcnt lgkmcnt(0)
          {MF} {v(D2,16)}, v[36:39], {v(PQ+4,4)}, {v(D2,16)}
          v_add_f32 v{D2+8}, {f32(1e-6)}, v{D2+8}
          v_rcp_f32 v{D2+8}, v{D2+8}""")
    for r in range(0, 8, 2):
        A(f"v_pk_mul_f32 {v(D2+r,2)}, {v(D2+r,2)}, {v(D2+8,2)} op_sel_hi:[1,0]")
    for r in range(0, 8, 2):
        A(f"v_cvt_pk_bf16_f32 v{32+r//2}, v{D2+r}, v{D2+r+1}")
    A(f"buffer_store_dwordx4 v[32:35], v{VL16}, {s(SWS,4)}, s{sO} offen{SC}")
    st(A)
    if st.on:
        A("s_waitcnt vmcnt(0)")
        st(A)
    st.dump(A, SWS, sW, 0, 40)
    A("L1_done:\ns_endpgm")

    A("L1_pre:")
    A(f"s_cmp_eq_u32 s{sC}, 6\ns_cbranch_scc1 L1_pre6")
    for t in range(3):
        c = CS + 2 * t
        A(f"""v_add_f32 v{c}, v{c}, v{c+1}
              v_cvt_pk_bf16_f32 v{c+1}, v{c}, v{c}
              v_lshlrev_b32 v{c+1}, 16, v{c+1}
              v_sub_f32 v{c}, v{c}, v{c+1}
              v_cvt_pk_bf16_f32 v{c}, v{c+1}, v{c}
              ds_write_b32 v{VCSW}, v{c} offset:{1024*t}""")
    A("s_waitcnt lgkmcnt(0)\ns_branch L1_pre_ret")
    A("L1_pre6:\ns_waitcnt vmcnt(0) lgkmcnt(0)\ns_branch L1_pre_ret")
    poll = f"buffer_load_dword v{VPOLL}, v{VL4}, {s(SDB,4)}, 0 offen sc1"
    A("L1_post:")
    A(f"s_cmp_eq_u32 s{sC}, 5\ns_cbranch_scc1 L1_post5")
    A(f"s_cmp_eq_u32 s{sC}, 6\ns_cbranch_scc1 L1_post6")
    A(f"""s_and_b32 s3, s2, 63
          s_lshl_b32 s3, s3, 2
          v_mov_b32 v{CT}, 1
          v_mov_b32 v{CT+1}, 0
          s_mov_b64 exec, 1
          buffer_atomic_add v{CT}, v{CT+1}, {s(SDB,4)}, s3 offen sc1
          s_mov_b64 exec, -1
          s_branch L1_post_ret
          L1_post5:
          {poll}
          s_branch L1_post_ret
          L1_post6:
          s_mov_b32 s{sSPIN}, {SPIN}
          L1_pchk:
          v_cmp_ne_u32 s[58:59], 4, v{VPOLL}
          s_cmp_eq_u64 s[58:59], 0
          s_cbranch_scc1 L1_pok
          s_sub_u32 s{sSPIN}, s{sSPIN}, 1
          s_cbranch_scc1 L1_pok
          {poll}
          s_waitcnt vmcnt(0)
          s_branch L1_pchk
          L1_pok:
          s_lshl_b32 s3, s{sI}, 3
          s_add_u32 s3, s3, s{sW}
          s_lshl_b32 s3, s3, 8
          s_add_u32 s3, s3, {WS_ST}
          s_xor_b32 s62, s3, 0x400
          buffer_load_dwordx2 {v(ST0,2)}, v{VSTA}, {s(SWS,4)}, s3 offen sc1
          buffer_load_dwordx2 {v(ST1,2)}, v{VSTA}, {s(SWS,4)}, s62 offen sc1
          s_branch L1_post_ret""")
    return A


def k2(opt):
    A = Asm()
    st = Stamp(opt.get("stamps"), 86)
    SWA, SWB, SWS, SX, SO = 4, 8, 12, 16, 20
    sW, sMI, sKQ, sM0, sBO = 32, 33, 34, 35, 36
    ACa, ACb = 16, 48
    AF = 80
    BF = 96
    VW = 240
    RA = 244
    VL16, VXO = 250, 251
    XR = 252
    A("s_cmp_ge_u32 s2, 256\ns_cbranch_scc1 L2_done")
    st(A)
    A("s_load_dwordx16 s[64:79], s[0:1], 0")
    A("s_load_dwordx4 s[80:83], s[0:1], 64")
    A("s_load_dwordx2 s[84:85], s[0:1], 80")
    A("v_lshrrev_b32 v2, 6, v0\nv_and_b32 v1, 63, v0")
    A(f"v_readfirstlane_b32 s{sW}, v2")
    A(f"""s_and_b32 s40, s2, 7
          s_bfe_u32 s41, s2, 0x20003
          s_lshr_b32 s42, s2, 5
          s_and_b32 s{sMI}, s{sW}, 1
          s_lshr_b32 s{sKQ}, s{sW}, 1
          s_lshl_b32 s43, s40, 2
          s_add_u32 s43, s43, s41
          s_lshl_b32 s44, s43, 1
          s_add_u32 s44, s44, s{sMI}
          s_mul_i32 s44, s44, 144
          s_mul_i32 s45, s{sKQ}, 36
          s_add_u32 s44, s44, s45
          s_lshl_b32 s{sBO}, s44, 10
          s_lshl_b32 s{sM0}, s{sW}, 12""")
    A(f"""v_lshrrev_b32 v2, 3, v1
          v_and_b32 v3, 7, v1
          v_bfe_u32 v7, v1, 4, 1
          v_lshlrev_b32 v5, 2, v7
          v_xor_b32 v5, v5, v3
          v_lshlrev_b32 v5, 4, v5
          s_lshl_b32 s3, s{sMI}, 5
          v_add_u32 v6, s3, v2
          v_lshl_add_u32 v{VW}, v6, 10, v5
          v_add_u32 v{VW+1}, 7168, v{VW}
          v_add_u32 v{VW+2}, 14336, v{VW}
          v_add_u32 v{VW+3}, 21504, v{VW}
          v_lshlrev_b32 v{VL16}, 4, v1
          v_and_b32 v8, 31, v1
          v_lshrrev_b32 v9, 5, v1
          v_bfe_u32 v10, v1, 2, 2
          v_and_b32 v11, 3, v1
          v_lshl_add_u32 v5, v9, 2, v10
          v_lshlrev_b32 v5, 7, v5
          v_lshrrev_b32 v6, 1, v10
          v_lshl_add_u32 v5, v6, 6, v5
          v_lshl_add_u32 v5, v7, 5, v5
          v_lshl_add_u32 v5, v11, 3, v5
          s_lshl_b32 s3, s{sKQ}, 13
          v_add_u32 v{RA}, s3, v5
          v_xor_b32 v{RA+1}, 64, v{RA}
          v_add_u32 v{RA+2}, 0x10000, v{RA}
          v_add_u32 v{RA+3}, 0x10000, v{RA+1}
          v_add_u32 v{RA+4}, 0x20000, v{RA}
          v_add_u32 v{RA+5}, 0x20000, v{RA+1}
          s_lshl_b32 s3, s{sW}, 3
          v_add_u32 v12, s3, v2
          v_lshlrev_b32 v{VXO}, 10, v12
          v_lshl_add_u32 v{VXO}, v3, 4, v{VXO}""")
    A("s_waitcnt lgkmcnt(0)")
    st(A)
    A(f"""s_lshl_b32 s46, s42, 7
          s_mul_i32 s47, s{sKQ}, {576*1024}
          s_add_u32 s47, s47, s46
          s_add_u32 s78, s78, s47
          s_addc_u32 s79, s79, 0
          s_add_u32 s70, s70, s46
          s_addc_u32 s71, s71, 0
          s_sub_u32 s70, s70, 0x10000
          s_subb_u32 s71, s71, 0
          s_cmp_eq_u32 s{sKQ}, 3
          s_cselect_b32 s70, s70, s78
          s_cselect_b32 s71, s71, s79""")
    srd(A, SWA, 78, 79, 0); srd(A, SWB, 70, 71, 0)
    A(f"""s_sub_u32 s{SWA+2}, {1792*1024}, s47
          s_sub_u32 s3, {512*1024+65536}, s46
          s_cmp_eq_u32 s{sKQ}, 3
          s_cselect_b32 s{SWB+2}, s3, s{SWA+2}""")
    srd(A, SWS, 84, 85, WS_SIZE)

    def wdma(stg):
        o = [f"s_add_u32 m0, s{sM0}, {(stg % 5) * 32768}", f"s_mov_b32 s3, {stg * 65536}"]
        for u in range(4):
            o.append(f"buffer_load_dwordx4 v{VW+u}, {s(SWA if stg == 0 else SWB,4)}, s3 offen offset:{1024*u} lds")
        return o

    def bload(stg):
        o = [f"s_add_u32 s48, s{sBO}, {stg*4096}"]
        for u in range(4):
            o.append(f"buffer_load_dwordx4 {v(BF+16*stg+4*u,4)}, v{VL16}, {s(SWS,4)}, s48 offen offset:{1024*u}")
        return o
    for stg in range(5):
        for x in wdma(stg) + bload(stg): A(x)
    for stg in range(5, 9):
        for x in bload(stg): A(x)
    A(f"""s_lshl_b32 s3, s43, 16
          s_add_u32 s3, s3, s46
          s_add_u32 s64, s64, s3
          s_addc_u32 s65, s65, 0
          s_add_u32 s80, s80, s3
          s_addc_u32 s81, s81, 0""")
    srd(A, SX, 64, 65, 0); srd(A, SO, 80, 81, 0)
    A(f"s_sub_u32 s{SX+2}, 0x10000, s46\ns_mov_b32 s{SO+2}, s{SX+2}")
    A(f"buffer_load_dwordx4 {v(XR,4)}, v{VXO}, {s(SX,4)}, 0 offen")
    st(A)

    def reads(g):
        stg, ks = divmod(g, 4)
        sl = stg % 5
        f = AF + 8 * (g & 1)
        o = []
        for t in range(2):
            for q in range(2):
                o.append(f"ds_read_b64_tr_b16 {v(f+4*t+2*q,2)}, v{RA+2*(sl>>1)+t} offset:{(sl&1)*32768+ks*2048+q*1024}")
        return o

    def mf(g, cin=None):
        f = AF + 8 * (g & 1)
        acc = ACa if g < 4 else ACb
        o = []
        for t in range(2):
            c = v(acc + 16 * t, 16)
            if g == 0: c = "0"
            if cin == "a": c = v(ACa + 16 * t, 16)
            if cin == "0": c = "0"
            o.append(f"{MF} {v(acc+16*t,16)}, {v(f+4*t,4)}, {v(BF+4*g,4)}, {c}")
        return o

    issued = []
    for stg in range(5): issued += [("W", stg)] * 4 + [("B", stg)] * 4
    for stg in range(5, 9): issued += [("B", stg)] * 4
    issued += [("X", 0)]

    def need(stg):
        last = max(i for i, t in enumerate(issued) if t in (("W", stg), ("B", stg)))
        return len(issued) - 1 - last

    A(f"s_waitcnt vmcnt({need(0)})\ns_barrier")
    st(A)
    for x in reads(0): A(x)
    for g in range(36):
        stg, ks = divmod(g, 4)
        post = []
        if ks == 3 and stg < 8:
            A(f"s_waitcnt vmcnt({need(stg+1)}) lgkmcnt(0)\ns_barrier")
            if stg + 5 <= 8:
                post = wdma(stg + 5)
                issued += [("W", stg + 5)] * 4
        else:
            A("s_waitcnt lgkmcnt(0)")
        nxt = reads(g + 1) if g < 35 else []
        if g == 4:
            A(f"s_cmp_eq_u32 s{sKQ}, 3\ns_cbranch_scc1 L2_z")
            for x in mf(g, "a"): A(x)
            A("s_branch L2_z2\nL2_z:")
            for x in mf(g, "0"): A(x)
            A("L2_z2:")
            for x in nxt: A(x)
        else:
            m = mf(g)
            A(m[0])
            for x in nxt: A(x)
            A(m[1])
        for x in post: A(x)
    st(A)
    RS = 272
    A(f"""s_lshl_b32 s3, s{sMI}, 5
          v_add_u32 v5, s3, v8
          v_mul_u32_u24 v5, {RS}, v5
          v_lshl_add_u32 v5, v9, 4, v5
          s_cmp_eq_u32 s{sKQ}, 3
          s_cselect_b32 s3, 4, s{sKQ}
          s_mul_i32 s3, s3, {64*RS}
          v_add_u32 v6, s3, v5
          v_mul_u32_u24 v7, {RS}, v12
          v_lshl_add_u32 v7, v3, 5, v7
          s_barrier""")
    for t in range(2):
        for q in range(4):
            A(f"ds_write_b128 v6, {v(ACb+16*t+4*q,4)} offset:{t*128+q*32}")
    A(f"s_cmp_lg_u32 s{sKQ}, 3\ns_cbranch_scc1 L2_now")
    for t in range(2):
        for q in range(4):
            A(f"ds_write_b128 v5, {v(ACa+16*t+4*q,4)} offset:{3*64*RS+t*128+q*32}")
    A("L2_now:\ns_waitcnt lgkmcnt(0)\ns_barrier")
    A(f"v_add_u32 v6, {4*64*RS}, v7")
    for p in range(4):
        A(f"ds_read_b128 {v(96+8*p,4)}, v7 offset:{p*64*RS}\nds_read_b128 {v(100+8*p,4)}, v7 offset:{p*64*RS+16}")
    A("ds_read_b128 v[128:131], v6\nds_read_b128 v[132:135], v6 offset:16")
    for q in range(4):
        A(f"v_lshlrev_b32 v{136+2*q}, 16, v{XR+q}\nv_and_b32 v{137+2*q}, 0xffff0000, v{XR+q}")
    A("s_waitcnt lgkmcnt(6)")
    for r in range(0, 8, 2):
        A(f"v_pk_add_f32 {v(96+r,2)}, {v(96+r,2)}, {v(104+r,2)}")
    A("s_waitcnt lgkmcnt(2)")
    for r in range(0, 8, 2):
        A(f"v_pk_add_f32 {v(112+r,2)}, {v(112+r,2)}, {v(120+r,2)}")
    for r in range(0, 8, 2):
        A(f"v_pk_add_f32 {v(96+r,2)}, {v(96+r,2)}, {v(112+r,2)}")
    for r in range(8):
        A(f"v_mul_f32 v{104+r}, {f32(-LOG2E)}, v{96+r}")
    for r in range(8):
        A(f"v_exp_f32 v{104+r}, v{104+r}")
    for r in range(8):
        A(f"v_add_f32 v{104+r}, 1.0, v{104+r}")
    for r in range(8):
        A(f"v_rcp_f32 v{104+r}, v{104+r}")
    A("s_waitcnt lgkmcnt(0)")
    for r in range(0, 8, 2):
        A(f"v_pk_mul_f32 {v(96+r,2)}, {v(96+r,2)}, {v(104+r,2)}")
    for r in range(0, 8, 2):
        A(f"v_pk_fma_f32 {v(96+r,2)}, {v(96+r,2)}, {v(128+r,2)}, {v(136+r,2)}")
    for r in range(0, 8, 2):
        A(f"v_cvt_pk_bf16_f32 v{104+r//2}, v{96+r}, v{97+r}")
    A(f"buffer_store_dwordx4 v[104:107], v{VXO}, {s(SO,4)}, 0 offen")
    st(A)
    if st.on:
        A("s_waitcnt vmcnt(0)")
        st(A)
    st.dump(A, SWS, sW, 1, 40)
    A("L2_done:\ns_endpgm")
    return A


def build(opt, path):
    rep1, rep2 = {}, {}
    l1 = fix_hazards([x for x in k1(opt).lines], rep1)
    l2 = fix_hazards(k2(opt).lines, rep2)
    txt = build_file([dict(name="hh_k1_kernel", grid=256, block=512, lds=163840, lines=l1, vgpr=256),
                      dict(name="hh_k2_kernel", grid=256, block=512, lds=163840, lines=l2, vgpr=256)])
    open(path, "w").write(txt)
    return rep1, rep2


if __name__ == "__main__":
    opt = {}
    path = "v2k.s"
    for a_ in sys.argv[1:]:
        if "=" in a_:
            k, val = a_.split("=")
            opt[k] = int(val)
        else:
            path = a_
    print(build(opt, path))
```
